```python
import torch

def _softmax(x, axis=-1):
    return torch.softmax(x, dim=axis)
def _gelu(x):
    return torch.nn.functional.gelu(x, approximate="tanh")
def _silu(x):
    return torch.nn.functional.silu(x)
def _sigmoid(x):
    return torch.sigmoid(x)
def _layernorm(x, axis=-1, eps=1e-5):
    m = x.mean(dim=axis, keepdim=True)
    v = x.var(dim=axis, keepdim=True, unbiased=False)
    return (x - m) / torch.sqrt(v + eps)
def _scatter_add(tgt, idx, src, axis=0):
    return tgt.clone().index_add_(axis, idx, src)
def _segment_sum(src, seg, n):
    out = torch.zeros((n,) + src.shape[1:], dtype=src.dtype)
    return out.index_add_(0, seg, src)
def _pad(x, pw):
    flat = tuple(v for pair in reversed(pw) for v in pair)
    return torch.nn.functional.pad(x, flat)

kernel_name = 'standalone__edge_featured_mpnn_egc__graph'

def setup_inputs():

    _w = (lambda a: (lambda t: t.to(torch.bfloat16) if t.is_floating_point() else t)(torch.as_tensor(a)))
    N, deg, D, De = 12500, 32, 128, max(16, 1)
    E = N * deg
    return {
        "x": _w((lambda *s: torch.randn(*s, dtype=torch.bfloat16) * 0.1)(N, D)),
        "e_attr": _w((lambda *s: torch.randn(*s, dtype=torch.bfloat16) * 0.1)(E, De)),
        "src": _w((lambda lo, hi, *s: torch.randint(lo, hi, s))(0, N, E).to(torch.int64)),
        "dst": _w((lambda lo, hi, *s: torch.randint(lo, hi, s))(0, N, E).to(torch.int64)),
        "u_w": _w((lambda *s: torch.randn(*s, dtype=torch.bfloat16) * 0.05)(D, D)),
        "v_w": _w((lambda *s: torch.randn(*s, dtype=torch.bfloat16) * 0.05)(D, D)),
        "g_w": _w((lambda *s: torch.randn(*s, dtype=torch.bfloat16) * 0.1)(2 * D + De, D)),
    }

def reference(x, e_attr, src, dst, u_w, v_w, g_w):
    N, D = x.shape
    g_in = torch.concatenate([x[dst], x[src], e_attr], axis=-1)
    eta = _sigmoid(g_in @ g_w)
    hv = x @ v_w
    msg = eta * hv[src]
    agg = _segment_sum(msg, dst, N)
    return _silu(x @ u_w + agg)
```

```python
import re

TRANS = ('v_exp_f32','v_log_f32','v_rcp_f32','v_rsq_f32','v_sqrt_f32','v_sin_f32','v_cos_f32','v_rcp_iflag_f32')

def regs_of(tok):
    tok = tok.strip()
    tok = re.sub(r'^-', '', tok)
    m = re.fullmatch(r'abs\((.*)\)', tok)
    if m: tok = m.group(1)
    m = re.fullmatch(r'([vsa])(\d+)', tok)
    if m: return [(m.group(1), int(m.group(2)))]
    m = re.fullmatch(r'([vsa])\[(\d+):(\d+)\]', tok)
    if m: return [(m.group(1), i) for i in range(int(m.group(2)), int(m.group(3))+1)]
    if tok in ('vcc','vcc_lo','vcc_hi'): return [('vcc',0)]
    if tok in ('exec','exec_lo','exec_hi'): return [('exec',0)]
    if tok == 'm0': return [('m0',0)]
    if tok == 'scc': return [('scc',0)]
    return []

class Ins:
    __slots__=('op','kind','dst','src','srcC','passes','text','dpp','slots')

class Asm:
    def __init__(self):
        self.lines=[]
        self.hist=[]
        self.nop_count=0
    def raw(self, s):
        self.lines.append(s)
    def label(self, name):
        self.fence()
        self.lines.append(f'{name}:')
    def fence(self, n=None):
        need=0
        dist=0
        for ins in reversed(self.hist):
            if ins.kind=='mfma':
                need=max(need, (12 if ins.passes==8 else 8)-dist)
            elif ins.kind in('valu','trans'):
                need=max(need, 5-dist if any(r[0] in('s','vcc') for r in ins.dst) else 2-dist)
            elif ins.kind=='vmem' and ins.op.endswith(('x4','x3')) and 'store' in ins.op:
                need=max(need,2-dist)
            dist+=ins.slots
            if dist>16: break
        if need>0: self.nop(need)
        self.hist=[]
    def nop(self, n):
        while n>0:
            k=min(n,16)
            i=Ins(); i.op='s_nop'; i.kind='salu'; i.dst=[]; i.src=[]; i.srcC=[]; i.passes=0; i.dpp=False; i.slots=k
            self.lines.append(f'    s_nop {k-1}')
            self.hist.append(i); self.nop_count+=k
            n-=k
    def __call__(self, text):
        text=text.strip()
        code=text.split(';')[0].strip()
        m=re.match(r'(\S+)\s*(.*)', code)
        op=m.group(1); rest=m.group(2)
        ops=[]; mods=''
        parts=[p.strip() for p in rest.split(',')] if rest else []
        if parts:
            last=parts[-1]
            mm=re.match(r'(\S+)(\s+.*)?', last)
            parts[-1]=mm.group(1); mods=(mm.group(2) or '')
        mo=re.search(r'offset:(\d+)', mods)
        if mo:
            ov=int(mo.group(1))
            if op.startswith('buffer_'): assert ov<4096, text
            if op.startswith('global_'): assert ov<4096, text
            if op.startswith('ds_'): assert ov<65536, text
        ins=Ins(); ins.op=op; ins.text=text; ins.srcC=[]; ins.passes=0; ins.slots=1
        ins.dpp=('_dpp' in op) or ('row_' in mods) or ('quad_perm' in mods)
        R=[regs_of(p) for p in parts]
        flat=lambda L:[r for l in L for r in l]
        base=re.sub(r'_(e32|e64|dpp|sdwa)$','',op)
        if op.startswith('v_mfma'):
            ins.kind='mfma'; ins.dst=R[0]; ins.src=R[1]+R[2]; ins.srcC=R[3]
            ins.passes = 8 if '32x32' in op else 4
        elif op.startswith('v_cmp'):
            ins.kind='valu'; ins.dst=R[0]; ins.src=flat(R[1:])
            if op.startswith('v_cmpx'): ins.dst=ins.dst+[('exec',0)]
        elif op.startswith(('v_readfirstlane','v_readlane')):
            ins.kind='valu'; ins.dst=R[0]; ins.src=flat(R[1:])
        elif op.startswith('v_'):
            ins.kind='trans' if base in TRANS else 'valu'
            ins.dst=R[0]; ins.src=flat(R[1:])
            if base in('v_add_co_u32','v_addc_co_u32','v_sub_co_u32','v_subb_co_u32','v_mad_u64_u32'):
                ins.dst=R[0]+R[1]; ins.src=flat(R[2:])
            if base in('v_fmac_f32','v_dot2c_f32_bf16','v_pk_fmac_f16','v_writelane_b32'): ins.src=ins.src+R[0]
            if base=='v_cndmask_b32' and len(parts)==3: ins.src=ins.src+[('vcc',0)]
            if base.startswith('v_permlane'): ins.dst=R[0]+R[1]; ins.src=R[0]+R[1]
            if ins.dpp: ins.src=ins.src+R[0]
        elif op.startswith(('buffer_load','global_load','flat_load')):
            ins.kind='vmem'; ins.dst=R[0]; ins.src=flat(R[1:])
        elif op.startswith(('buffer_store','global_store','buffer_atomic','global_atomic')):
            ins.kind='vmem'; ins.dst=[]; ins.src=flat(R)
        elif op.startswith('ds_'):
            ins.kind='lds'
            if op.startswith(('ds_read','ds_bpermute','ds_permute','ds_swizzle')) or '_rtn' in op:
                ins.dst=R[0]; ins.src=flat(R[1:])
            else:
                ins.dst=[]; ins.src=flat(R)
        elif op.startswith('s_'):
            ins.kind='salu'
            if op.startswith(('s_cmp','s_cbranch','s_branch','s_waitcnt','s_barrier','s_endpgm','s_nop','s_setprio','s_sleep')):
                ins.dst=[]; ins.src=flat(R)
            else:
                ins.dst=R[0] if R else []; ins.src=flat(R[1:])
            if op=='s_nop': ins.slots=int(parts[0])+1
        else:
            raise ValueError('unknown op '+op)
        need=0; dist=0
        S=set(ins.src); D=set(ins.dst); C=set(ins.srcC)
        for p in reversed(self.hist):
            pd=set(p.dst)
            w=0
            if p.kind in('valu','trans'):
                vd={r for r in pd if r[0] in('v','a')}
                sd={r for r in pd if r[0] in('s','vcc')}
                ed={r for r in pd if r[0]=='exec'}
                if ins.kind=='mfma' and vd&(S|C): w=max(w,2)
                if p.kind=='trans' and ins.kind in('valu','mfma') and vd&(S|C): w=max(w,1)
                if p.kind=='trans' and ins.kind in('vmem','lds') and vd&S: w=max(w,1)
                if ins.kind in('valu','trans') and sd&S: w=max(w,2)
                if ins.op.startswith(('v_readlane','v_writelane')) and sd&S: w=max(w,4)
                if ins.kind=='vmem' and sd&S: w=max(w,5)
                if ins.op.startswith(('v_readfirstlane','v_readlane')) and vd&S: w=max(w,1)
                if ins.dpp and vd&S: w=max(w,2)
                if ins.op.startswith('v_permlane') and vd&S: w=max(w,2)
                if ed and ins.kind=='mfma': w=max(w,4)
                if ed and ins.dpp: w=max(w,5)
                if ed and ins.op.startswith(('v_readfirstlane','v_readlane','v_writelane')): w=max(w,4)
                if '_sdwa' in p.op and ins.kind in('valu','trans') and vd&S: w=max(w,1)
            elif p.kind=='mfma':
                big = p.passes==8
                if ins.kind in('valu','trans','vmem','lds') and pd&(S|D): w=max(w,12 if big else 8)
                if ins.kind=='mfma':
                    if pd&S: w=max(w,12 if big else 8)
                    if pd&C and not (C==pd and ins.passes==p.passes): w=max(w,10 if big else 6)
                if ins.kind in('valu','trans') and set(p.srcC)&D: w=max(w,7 if big else 3)
            elif p.kind=='vmem' and 'store' in p.op and p.op.endswith(('x4','x3')):
                if D & set(p.src) and ins.kind in ('valu','trans'): w=max(w,2)
                elif D & set(p.src): w=max(w,1)
            elif p.kind=='salu':
                if ('m0',0) in pd and ('lds' in mods or 'load_lds' in op): w=max(w,1)
            need=max(need,w-dist)
            dist+=p.slots
            if dist>20: break
        if need>0: self.nop(need)
        self.lines.append('    '+text)
        self.hist.append(ins)
        if len(self.hist)>64: self.hist=self.hist[-40:]
        if op.startswith(('s_cbranch','s_branch')):
            pass
    def text(self):
        return '\n'.join(self.lines)+'\n'
```

```python
import sys
sys.path.insert(0,'gen')
from asmlib import Asm

N=12500; E=400000; NB=13; NBK=962; W=256; CH=1563
T_OFF   = 0
XU_OFF  = 0x680000
XAF_OFF = 0xA00000
CF_OFF  = 0xE00000
OH_OFF  = 0xE01000
SORT_OFF= 0xE10000
OFF_OFF = 0x1000000
WS_SIZE = 268435456
NGEMM=196
K1_GRID = 256+NGEMM+1
CAP=1024
LOG2E_NEG='0xbfb8aa3b'

a=Asm()

def header():
    with open('standalone__edge_featured_mpnn_egc__graph.s.ref') as f:
        lines=f.read().split('\n')
    out=[]
    for l in lines:
        if l.startswith('; @launch'): break
        if l.startswith(';'): out.append(l)
    out.append(f'; @launch kernel=egc_prep_kernel grid=({K1_GRID},1,1) block=(256,1,1) lds=4352')
    out.append(f'; @launch kernel=standalone__edge_featured_mpnn_egc__graph_kernel grid=({NBK},1,1) block=(256,1,1) lds=32768')
    out.append('.amdgcn_target "amdgcn-amd-amdhsa--gfx950"')
    out.append('.text')
    return '\n'.join(out)

def srd(d, lo, hi, nrec, add=0):
    if add:
        a(f's_add_u32 s{d}, s{lo}, {hex(add)}')
        a(f's_addc_u32 s{d+1}, s{hi}, 0')
    else:
        a(f's_mov_b32 s{d}, s{lo}')
        a(f's_mov_b32 s{d+1}, s{hi}')
    a(f's_mov_b32 s{d+2}, {hex(nrec)}')
    a(f's_mov_b32 s{d+3}, 0x00020000')

def wave_scan(v, tmp):
    for sh in (1,2,4,8):
        a(f'v_add_u32_dpp v{v}, v{v}, v{v} row_shr:{sh} row_mask:0xf bank_mask:0xf bound_ctrl:0')
    a(f'v_add_u32_dpp v{v}, v{v}, v{v} row_bcast:15 row_mask:0xa bank_mask:0xf')
    a(f'v_add_u32_dpp v{v}, v{v}, v{v} row_bcast:31 row_mask:0xc bank_mask:0xf')

def branch(op, lbl):
    a.fence()
    a(f'{op} {lbl}')

def k1():
    a.raw('.globl egc_prep_kernel\n.p2align 8\n.type egc_prep_kernel,@function\negc_prep_kernel:')
    a(f's_cmp_ge_u32 s2, {K1_GRID}')
    branch('s_cbranch_scc1','K1_END')
    a('s_load_dwordx4 s[4:7], s[0:1], 0')
    a('s_load_dwordx4 s[8:11], s[0:1], 16')
    a('s_load_dwordx4 s[12:15], s[0:1], 32')
    a('s_load_dwordx2 s[16:17], s[0:1], 48')
    a('s_load_dwordx2 s[18:19], s[0:1], 72')
    a('v_lshrrev_b32 v1, 6, v0')
    a('v_and_b32 v2, 63, v0')
    a('v_readfirstlane_b32 s3, v1')
    a('v_lshrrev_b32 v3, 4, v2')
    a('v_and_b32 v4, 15, v2')
    a('s_waitcnt lgkmcnt(0)')
    a('s_cmp_ge_u32 s2, 256')
    branch('s_cbranch_scc1','K1_GEMM')
    srd(20, 8, 9, E*4)
    srd(24, 10, 11, E*4)
    srd(28, 18, 19, W*CH*4, SORT_OFF)
    srd(32, 18, 19, W*4096, OFF_OFF)
    a(f's_mul_i32 s36, s2, {CH}')
    a(f's_sub_u32 s37, {E}, s36')
    a(f's_min_u32 s37, s37, {CH}')
    a('v_mov_b32 v8, 0'); a('v_mov_b32 v9, 0'); a('v_mov_b32 v10, 0'); a('v_mov_b32 v11, 0')
    a('v_lshlrev_b32 v5, 4, v0')
    a('ds_write_b128 v5, v[8:11]')
    a('v_add_u32 v6, s36, v0')
    a('v_lshlrev_b32 v6, 2, v6')
    a('s_mov_b32 s43, 4096')
    for j in range(7):
        so='0' if j<4 else 's43'
        a(f'buffer_load_dword v{16+j}, v6, s[24:27], {so} offen offset:{(j&3)*1024}')
        a(f'buffer_load_dword v{24+j}, v6, s[20:23], {so} offen offset:{(j&3)*1024}')
    a('v_mov_b32 v7, 1')
    a('s_waitcnt lgkmcnt(0)')
    a('s_barrier')
    for j in range(7):
        a(f's_waitcnt vmcnt({12-2*j})')
        a(f'v_mul_u32_u24 v12, 80660, v{16+j}')
        a('v_lshrrev_b32 v12, 20, v12')
        a('v_mul_u32_u24 v13, 13, v12')
        a(f'v_sub_u32 v13, v{16+j}, v13')
        a(f'v_add_u32 v14, {j*256}, v0')
        a(f'v_lshl_or_b32 v{40+j}, v13, 14, v{24+j}')
        a(f'v_lshl_or_b32 v{40+j}, v14, 18, v{40+j}')
        a('v_cmp_gt_u32 vcc, s37, v14')
        a('v_mov_b32 v15, 1023')
        a('v_cndmask_b32 v12, v15, v12, vcc')
        a(f'v_lshlrev_b32 v{32+j}, 2, v12')
        a(f'ds_add_rtn_u32 v{48+j}, v{32+j}, v7')
    a('s_waitcnt lgkmcnt(0)')
    a('s_barrier')
    a('ds_read_b128 v[8:11], v5')
    a('s_waitcnt lgkmcnt(0)')
    a('v_add_u32 v12, v8, v9')
    a('v_add3_u32 v12, v12, v10, v11')
    a('v_mov_b32 v13, v12')
    wave_scan(13, 14)
    a('v_readlane_b32 s38, v13, 63')
    a('v_sub_u32 v13, v13, v12')
    a('s_lshl_b32 s39, s3, 2')
    a('v_mov_b32 v14, s38')
    a('v_mov_b32 v15, s39')
    a('ds_write_b32 v15, v14 offset:4096')
    a('s_waitcnt lgkmcnt(0)')
    a('s_barrier')
    a('v_mov_b32 v15, 0')
    a('ds_read_b128 v[56:59], v15 offset:4096')
    a('s_waitcnt lgkmcnt(0)')
    a('v_readfirstlane_b32 s40, v56')
    a('v_readfirstlane_b32 s41, v57')
    a('v_readfirstlane_b32 s42, v58')
    a('s_cmp_gt_u32 s3, 0'); a('s_cselect_b32 s40, s40, 0')
    a('s_cmp_gt_u32 s3, 1'); a('s_cselect_b32 s41, s41, 0')
    a('s_cmp_gt_u32 s3, 2'); a('s_cselect_b32 s42, s42, 0')
    a('s_add_u32 s40, s40, s41'); a('s_add_u32 s40, s40, s42')
    a('v_add_u32 v56, s40, v13')
    a('v_add_u32 v57, v56, v8')
    a('v_add_u32 v58, v57, v9')
    a('v_add_u32 v59, v58, v10')
    a('ds_write_b128 v5, v[56:59]')
    a('s_lshl_b32 s39, s2, 12')
    a('buffer_store_dwordx4 v[56:59], v5, s[32:35], s39 offen')
    a('s_waitcnt lgkmcnt(0)')
    a('s_barrier')
    for j in range(7):
        a(f'ds_read_b32 v{16+j}, v{32+j}')
    a('v_mov_b32 v15, 0x80000000')
    for j in range(7):
        a(f's_waitcnt lgkmcnt({6-j})')
        a(f'v_add3_u32 v12, v{16+j}, v{48+j}, s36')
        a('v_lshlrev_b32 v12, 2, v12')
        a(f'v_cmp_gt_u32 vcc, 4092, v{32+j}')
        a('v_cndmask_b32 v12, v15, v12, vcc')
        a(f'buffer_store_dword v{40+j}, v12, s[28:31], 0 offen')
    a('s_endpgm')
    a.label('K1_GEMM')
    a(f's_cmp_ge_u32 s2, {256+NGEMM}')
    branch('s_cbranch_scc1','K1_MISC')
    a('s_sub_u32 s36, s2, 256')
    a('s_add_u32 s20, s16, 0x8000'); a('s_addc_u32 s21, s17, 0')
    a('s_cmp_eq_u32 s3, 1'); a('s_cselect_b32 s20, s14, s20'); a('s_cselect_b32 s21, s15, s21')
    a('s_cmp_eq_u32 s3, 2'); a('s_cselect_b32 s20, s12, s20'); a('s_cselect_b32 s21, s13, s21')
    a('s_cmp_eq_u32 s3, 3'); a('s_cselect_b32 s20, s16, s20'); a('s_cselect_b32 s21, s17, s21')
    a('s_mov_b32 s22, 0x8000'); a('s_mov_b32 s23, 0x00020000')
    srd(24, 4, 5, N*256)
    a('s_mov_b32 s40, 0x05040100'); a('s_mov_b32 s41, 0x07060302')
    a('v_lshlrev_b32 v5, 11, v3')
    a('v_lshl_add_u32 v5, v4, 4, v5')
    FR=lambda s,t: 64+(s*8+t)*4
    def ldw(s):
        st=192+(s&1)*32
        a(f's_mov_b32 s42, {s*8192}')
        for j in range(8):
            a(f'buffer_load_dwordx4 v[{st+4*j}:{st+4*j+3}], v5, s[20:23], s42 offen offset:{j*256}')
    ldw(0); ldw(1)
    for s in range(4):
        st=192+(s&1)*32
        a(f's_waitcnt vmcnt({8 if s<3 else 0})')
        for t in range(8):
            for p in range(4):
                a(f'v_perm_b32 v{FR(s,t)+p}, v{st+4*(2*p+1)+(t>>1)}, v{st+4*(2*p)+(t>>1)}, s{40+(t&1)}')
        if s+2<4: ldw(s+2)
    a('s_cmp_eq_u32 s3, 3')
    branch('s_cbranch_scc1','K1_GA')
    a(f's_add_u32 s28, s18, {hex(T_OFF)}'); a('s_addc_u32 s29, s19, 0'); a(f's_mov_b32 s30, {hex(N*512)}'); a('s_mov_b32 s43, 9')
    a('s_cmp_eq_u32 s3, 1')
    branch('s_cbranch_scc0','K1_G1')
    a('s_add_u32 s28, s28, 256'); a('s_addc_u32 s29, s29, 0'); a(f's_mov_b32 s30, {hex(N*512-256)}')
    a.label('K1_G1')
    a('s_cmp_eq_u32 s3, 2')
    branch('s_cbranch_scc0','K1_G2')
    a(f's_add_u32 s28, s18, {hex(XU_OFF)}'); a('s_addc_u32 s29, s19, 0'); a(f's_mov_b32 s30, {hex(N*256)}'); a('s_mov_b32 s43, 8')
    a.label('K1_G2')
    a('s_mov_b32 s31, 0x00020000')
    a('s_lshl_b32 s44, s36, 6')
    a('s_mov_b32 s45, 0')
    def tile_mm():
        a('v_add_u32 v6, s44, v4')
        a('v_lshlrev_b32 v6, 8, v6')
        a('v_lshl_add_u32 v6, v3, 4, v6')
        for s in range(4):
            a(f'buffer_load_dwordx4 v[{192+4*s}:{195+4*s}], v6, s[24:27], 0 offen offset:{s*64}')
        for r in range(32): a(f'v_mov_b32 v{16+r}, 0')
        for s in range(4):
            a(f's_waitcnt vmcnt({3-s})')
            for t in range(8):
                a(f'v_mfma_f32_16x16x32_bf16 v[{16+4*t}:{19+4*t}], v[{192+4*s}:{195+4*s}], v[{FR(s,t)}:{FR(s,t)+3}], v[{16+4*t}:{19+4*t}]')
    a.label('K1_GLOOP')
    tile_mm()
    a('v_lshl_add_u32 v7, v3, 2, s44')
    a('v_lshlrev_b32 v7, s43, v7')
    a('v_lshl_add_u32 v7, v4, 4, v7')
    a('v_mov_b32 v8, 1'); a('v_lshlrev_b32 v8, s43, v8')
    for i in range(4):
        for d in range(4):
            a(f'v_cvt_pk_bf16_f32 v{208+d}, v{16+4*(2*d)+i}, v{16+4*(2*d+1)+i}')
        a('buffer_store_dwordx4 v[208:211], v7, s[28:31], 0 offen')
        if i<3: a('v_add_u32 v7, v7, v8')
    a('s_add_u32 s44, s44, 16')
    a('s_add_u32 s45, s45, 1')
    a('s_cmp_lt_u32 s45, 4')
    branch('s_cbranch_scc1','K1_GLOOP')
    a('s_endpgm')
    a.label('K1_GA')
    srd(28, 18, 19, NBK*4096, XAF_OFF)
    a('s_mul_i32 s46, s36, 5')
    a('s_mov_b32 s45, 0')
    a('v_lshrrev_b32 v9, 1, v3')
    a('v_lshl_add_u32 v9, v9, 4, v4')
    a('v_lshlrev_b32 v9, 4, v9')
    a('v_and_b32 v10, 1, v3')
    a('v_lshl_add_u32 v9, v10, 3, v9')
    a.label('K1_ALOOP')
    a(f's_cmp_ge_u32 s46, {NBK}')
    branch('s_cbranch_scc1','K1_END')
    a('s_mul_i32 s44, s46, 13')
    tile_mm()
    a('s_lshl_b32 s47, s46, 12')
    for t in range(8):
        a(f'v_cvt_pk_bf16_f32 v{208+2*(t&1)}, v{16+4*t}, v{17+4*t}')
        a(f'v_cvt_pk_bf16_f32 v{209+2*(t&1)}, v{18+4*t}, v{19+4*t}')
        a(f'buffer_store_dwordx2 v[{208+2*(t&1)}:{209+2*(t&1)}], v9, s[28:31], s47 offen offset:{t*512}')
    a('s_add_u32 s46, s46, 1')
    a('s_add_u32 s45, s45, 1')
    a('s_cmp_lt_u32 s45, 5')
    branch('s_cbranch_scc1','K1_ALOOP')
    a('s_endpgm')
    a.label('K1_MISC')
    a('s_cmp_eq_u32 s3, 1')
    branch('s_cbranch_scc1','K1_OH')
    a('s_cmp_eq_u32 s3, 0')
    branch('s_cbranch_scc0','K1_END')
    srd(20, 16, 17, 4096, 0x10000)
    srd(28, 18, 19, 4096, CF_OFF)
    a('s_mov_b32 s40, 0x05040100'); a('s_mov_b32 s41, 0x07060302')
    a('v_lshlrev_b32 v5, 11, v3')
    a('v_lshl_add_u32 v5, v4, 4, v5')
    for j in range(8):
        a(f'buffer_load_dwordx4 v[{16+4*j}:{19+4*j}], v5, s[20:23], 0 offen offset:{j*256}')
    a('v_lshlrev_b32 v6, 4, v2')
    a('v_mov_b32 v7, 0x80000000')
    a('v_cmp_gt_u32 vcc, 32, v2')
    a('v_cndmask_b32 v6, v7, v6, vcc')
    a('s_waitcnt vmcnt(0)')
    for t in range(8):
        for p in range(4):
            a(f'v_perm_b32 v{48+p}, v{16+4*(2*p+1)+(t>>1)}, v{16+4*(2*p)+(t>>1)}, s{40+(t&1)}')
        a(f'buffer_store_dwordx4 v[48:51], v6, s[28:31], 0 offen offset:{t*512}')
    a('s_endpgm')
    a.label('K1_OH')
    srd(28, 18, 19, 1024, OH_OFF)
    for it in range(3):
        a(f'v_add_u32 v5, {it*64}, v2')
        a('v_lshrrev_b32 v6, 3, v5')
        a('v_and_b32 v7, 7, v5')
        a('v_lshrrev_b32 v8, 1, v6')
        a('v_and_b32 v9, 1, v6')
        a('v_lshlrev_b32 v9, 4, v9')
        a('v_mov_b32 v10, 0x3f80')
        a('v_lshlrev_b32 v10, v9, v10')
        a('v_cmp_eq_u32 vcc, v8, v7')
        a('v_cndmask_b32 v10, 0, v10, vcc')
        a('v_lshlrev_b32 v5, 2, v5')
        a('buffer_store_dword v10, v5, s[28:31], 0 offen')
    a.label('K1_END')
    a('s_endpgm')

BW=0; LA=8192; LE=12288; LO=16384; LM=20480; LW=22528
def k2():
    nm='standalone__edge_featured_mpnn_egc__graph_kernel'
    a.raw(f'.globl {nm}\n.p2align 8\n.type {nm},@function\n{nm}:')
    a(f's_cmp_ge_u32 s2, {NBK}')
    branch('s_cbranch_scc1','K2_END')
    a('s_load_dwordx2 s[4:5], s[0:1], 8')
    a('s_load_dwordx2 s[6:7], s[0:1], 56')
    a('s_load_dwordx2 s[8:9], s[0:1], 72')
    a('v_lshrrev_b32 v9, 6, v0')
    a('v_and_b32 v10, 63, v0')
    a('v_readfirstlane_b32 s3, v9')
    a('v_lshrrev_b32 v11, 4, v10')
    a('v_and_b32 v5, 15, v10')
    a('s_waitcnt lgkmcnt(0)')
    srd(12, 8, 9, WS_SIZE)
    srd(16, 8, 9, N*512, T_OFF)
    srd(20, 8, 9, W*CH*4, SORT_OFF)
    a('v_lshlrev_b32 v12, 12, v0')
    a(f's_lshl_b32 s24, s2, 2')
    a(f's_add_u32 s24, s24, {hex(OFF_OFF)}')
    a('buffer_load_dwordx2 v[14:15], v12, s[12:15], s24 offen')
    a('s_lshl_b32 s25, s2, 12')
    a(f's_add_u32 s25, s25, {hex(XAF_OFF-512)}')
    a(f'v_mov_b32 v12, {hex(CF_OFF)}')
    a('v_mov_b32 v13, s25')
    a('v_cmp_gt_u32 vcc, 32, v10')
    a('v_cndmask_b32 v12, v13, v12, vcc')
    a('v_lshl_add_u32 v12, v10, 4, v12')
    a('s_lshl_b32 s26, s3, 10')
    a('buffer_load_dwordx4 v[16:19], v12, s[12:15], s26 offen')
    a('buffer_load_dwordx4 v[20:23], v12, s[12:15], s26 offen offset:512')
    a('v_lshlrev_b32 v1, 4, v5')
    a(f'v_lshl_add_u32 v2, v11, 4, {LA}') if False else None
    a('v_lshlrev_b32 v2, 4, v11'); a(f'v_add_u32 v2, {LA}, v2')
    a('v_lshlrev_b32 v3, 3, v11'); a(f'v_add_u32 v3, {LM}, v3')
    a(f'v_mov_b32 v4, {LE}'); a(f'v_mov_b32 v13, {LO}')
    a('v_cndmask_b32 v4, v13, v4, vcc')
    a('v_lshl_add_u32 v4, v5, 2, v4')
    a(f's_add_u32 s26, s8, {hex(OH_OFF-32)}'); a('s_addc_u32 s27, s9, 0')
    a('v_mov_b32 v6, s4'); a('v_mov_b32 v7, s5')
    a('v_mov_b32 v12, s26'); a('v_mov_b32 v13, s27')
    a('v_cndmask_b32 v6, v12, v6, vcc'); a('v_cndmask_b32 v7, v13, v7, vcc')
    a('v_lshlrev_b32 v12, 4, v11')
    a('v_add_co_u32 v6, vcc, v6, v12'); a('v_addc_co_u32 v7, vcc, 0, v7, vcc')
    a('v_lshlrev_b32 v8, 4, v10')
    for r in range(32): a(f'v_mov_b32 v{96+r}, 0')
    a('s_lshl_b32 s26, s3, 11')
    a('v_add_u32 v12, s26, v8')
    a('s_waitcnt vmcnt(1)')
    a('ds_write_b128 v12, v[16:19]')
    a('s_waitcnt vmcnt(0)')
    a('ds_write_b128 v12, v[20:23] offset:1024')
    a('v_sub_u32 v16, v15, v14')
    a('v_mov_b32 v17, v16')
    wave_scan(17, 18)
    a('v_readlane_b32 s28, v17, 63')
    a('v_sub_u32 v17, v17, v16')
    a('s_lshl_b32 s29, s3, 2')
    a('v_mov_b32 v18, s28'); a('v_mov_b32 v19, s29')
    a(f'ds_write_b32 v19, v18 offset:{LW}')
    a('s_waitcnt lgkmcnt(0)')
    a('s_barrier')
    a('v_mov_b32 v19, 0')
    a(f'ds_read_b128 v[20:23], v19 offset:{LW}')
    a('s_waitcnt lgkmcnt(0)')
    for i in range(4): a(f'v_readfirstlane_b32 s{28+i}, v{20+i}')
    a('s_add_u32 s32, s28, s29'); a('s_add_u32 s32, s32, s30'); a('s_add_u32 s32, s32, s31')
    a('s_cmp_gt_u32 s3, 0'); a('s_cselect_b32 s28, s28, 0')
    a('s_cmp_gt_u32 s3, 1'); a('s_cselect_b32 s29, s29, 0')
    a('s_cmp_gt_u32 s3, 2'); a('s_cselect_b32 s30, s30, 0')
    a('s_add_u32 s28, s28, s29'); a('s_add_u32 s28, s28, s30')
    a('v_add_u32 v17, s28, v17')
    a(f'v_mul_u32_u24 v9, {CH}, v0')
    a('v_add_u32 v9, v9, v14')
    a('v_mov_b32 v10, v16')
    a('v_mov_b32 v11, v17')
    a(f'v_mul_u32_u24 v0, {CH}, v0')
    a('s_mov_b32 s33, 0')
    a('s_cmp_eq_u32 s32, 0')
    branch('s_cbranch_scc1','K2_RED')
    a.label('K2_ROUND')
    a('v_sub_u32 v16, s33, v11')
    a('v_max_i32 v16, 0, v16')
    a(f's_add_u32 s34, s33, {CAP}')
    a('v_sub_u32 v17, s34, v11')
    a('v_min_i32 v17, v17, v10')
    a.label('K2_FILL')
    a('v_cmp_lt_i32 vcc, v16, v17')
    a('s_and_saveexec_b64 s[36:37], vcc')
    branch('s_cbranch_execz','K2_FILL_DONE')
    a('v_add_u32 v18, v9, v16')
    a('v_lshlrev_b32 v18, 2, v18')
    a('buffer_load_dwordx4 v[20:23], v18, s[20:23], 0 offen')
    a('v_add_u32 v19, v11, v16')
    a('v_subrev_u32 v19, s33, v19')
    a('s_waitcnt vmcnt(0)')
    for k in range(4):
        if k>0:
            a('v_add_u32 v16, 1, v16')
            a('v_add_u32 v19, 1, v19')
            a('v_cmp_lt_i32 vcc, v16, v17')
            a('s_and_b64 exec, exec, vcc')
        r=20+k
        a(f'v_and_b32 v24, 0x3fff, v{r}')
        a('v_lshlrev_b32 v24, 9, v24')
        a(f'v_bfe_u32 v25, v{r}, 14, 4')
        a(f'v_lshrrev_b32 v26, 18, v{r}')
        a('v_add_u32 v26, v26, v0')
        a('v_lshlrev_b32 v26, 5, v26')
        a('v_lshlrev_b32 v27, 2, v19')
        a(f'ds_write_b32 v27, v24 offset:{LA}')
        a(f'ds_write_b32 v27, v26 offset:{LE}')
        a('v_lshlrev_b32 v28, 5, v25')
        a(f'ds_write_b32 v27, v28 offset:{LO}')
        a('v_lshlrev_b32 v28, v25, 1') if False else None
        a('v_mov_b32 v29, 1')
        a('v_lshlrev_b32 v28, v25, v29')
        a('v_lshlrev_b32 v27, 1, v19')
        a(f'ds_write_b16 v27, v28 offset:{LM}')
    a('s_mov_b64 exec, s[36:37]')
    a('v_add_u32 v16, 1, v16')
    branch('s_branch','K2_FILL')
    a.label('K2_FILL_DONE')
    a('s_mov_b64 exec, s[36:37]')
    a('s_sub_u32 s35, s32, s33')
    a(f's_min_u32 s35, s35, {CAP}')
    a('s_add_u32 s38, s35, 15'); a('s_and_b32 s38, s38, 0xfffffff0')
    a('v_lshrrev_b32 v16, 4, v8')
    a('v_add_u32 v16, s35, v16')
    a('v_cmp_gt_u32 vcc, s38, v16')
    a('s_and_saveexec_b64 s[36:37], vcc')
    branch('s_cbranch_execz','K2_PAD_DONE')
    a('v_lshlrev_b32 v17, 2, v16')
    a('v_mov_b32 v18, 0'); a('v_mov_b32 v19, 512')
    a(f'ds_write_b32 v17, v18 offset:{LA}')
    a(f'ds_write_b32 v17, v18 offset:{LE}')
    a(f'ds_write_b32 v17, v19 offset:{LO}')
    a('v_lshlrev_b32 v17, 1, v16')
    a(f'ds_write_b16 v17, v18 offset:{LM}')
    a.label('K2_PAD_DONE')
    a('s_mov_b64 exec, s[36:37]')
    a('s_waitcnt lgkmcnt(0)')
    a('s_barrier')
    a('s_lshr_b32 s38, s38, 4')
    a('s_mov_b32 s39, s3')
    a('s_cmp_ge_u32 s39, s38')
    branch('s_cbranch_scc1','K2_TILES_DONE')
    a.label('K2_TILE')
    a('s_lshl_b32 s40, s39, 6')
    a('v_add_u32 v12, s40, v2')
    a('ds_read_b128 v[80:83], v12')
    a('v_add_u32 v12, s40, v4')
    a('ds_read_b32 v14, v12')
    a('s_lshl_b32 s41, s39, 5')
    a('v_add_u32 v13, s41, v3')
    a('ds_read_b64 v[92:93], v13')
    a('s_waitcnt lgkmcnt(2)')
    for i in range(4):
        a(f'v_add_u32 v{80+i}, v{80+i}, v1')
        a(f'buffer_load_dwordx4 v[{16+4*i}:{19+4*i}], v{80+i}, s[16:19], 0 offen')
    a('s_waitcnt lgkmcnt(1)')
    a('v_add_co_u32 v12, vcc, v6, v14'); a('v_addc_co_u32 v13, vcc, 0, v7, vcc')
    a('global_load_dwordx4 v[88:91], v[12:13], off')
    for i in range(4):
        a(f'buffer_load_dwordx4 v[{32+4*i}:{35+4*i}], v{80+i}, s[16:19], 0 offen offset:256')
    a('s_waitcnt lgkmcnt(0)')
    for k in range(2):
        a(f'v_lshrrev_b32 v{92+k}, v5, v{92+k}')
        a(f'v_and_b32 v{92+k}, 0x10001, v{92+k}')
        a(f'v_mul_u32_u24 v{92+k}, 0x3f80, v{92+k}')
    a('ds_read_b128 v[80:83], v8')
    a('ds_read_b128 v[84:87], v8 offset:1024')
    for i in range(4):
        a(f's_waitcnt vmcnt({8-i})')
        for d in range(4):
            a(f'v_lshlrev_b32 v{48+4*(2*d)+i}, 16, v{16+4*i+d}')
            a(f'v_and_b32 v{48+4*(2*d+1)+i}, 0xffff0000, v{16+4*i+d}')
    a('s_waitcnt vmcnt(4)')
    for t in range(8):
        bw=80+4*(t&1)
        a(f's_waitcnt lgkmcnt({1 if t<7 else 0})')
        a(f'v_mfma_f32_16x16x32_bf16 v[{48+4*t}:{51+4*t}], v[88:91], v[{bw}:{bw+3}], v[{48+4*t}:{51+4*t}]')
        if t+2<8:
            a(f'ds_read_b128 v[{bw}:{bw+3}], v8 offset:{(t+2)*1024}')
    a('s_waitcnt vmcnt(0)')
    for t in range(8):
        ac=48+4*t
        for i in range(4): a(f'v_mul_f32 v{ac+i}, {LOG2E_NEG}, v{ac+i}')
        for i in range(4): a(f'v_exp_f32 v{ac+i}, v{ac+i}')
        for i in range(4): a(f'v_add_f32 v{ac+i}, 1.0, v{ac+i}')
        for i in range(4): a(f'v_rcp_f32 v{ac+i}, v{ac+i}')
        for i in range(4):
            h=32+4*i+(t>>1)
            if t&1: a(f'v_and_b32 v{12+i}, 0xffff0000, v{h}')
            else:   a(f'v_lshlrev_b32 v{12+i}, 16, v{h}')
        for i in range(4): a(f'v_mul_f32 v{ac+i}, v{ac+i}, v{12+i}')
        a(f'v_cvt_pk_bf16_f32 v{ac}, v{ac}, v{ac+1}')
        a(f'v_cvt_pk_bf16_f32 v{ac+1}, v{ac+2}, v{ac+3}')
        a(f'v_mfma_f32_16x16x16_bf16 v[{96+4*t}:{99+4*t}], v[92:93], v[{ac}:{ac+1}], v[{96+4*t}:{99+4*t}]')
    a('s_add_u32 s39, s39, 4')
    a('s_cmp_lt_u32 s39, s38')
    branch('s_cbranch_scc1','K2_TILE')
    a.label('K2_TILES_DONE')
    a('s_barrier')
    a(f's_add_u32 s33, s33, {CAP}')
    a('s_cmp_lt_u32 s33, s32')
    branch('s_cbranch_scc1','K2_ROUND')
    a.label('K2_RED')
    a('s_barrier')
    a('s_lshl_b32 s26, s3, 13')
    a('v_add_u32 v12, s26, v8')
    for t in range(8):
        a(f'ds_write_b128 v12, v[{96+4*t}:{99+4*t}] offset:{t*1024}')
    a('v_lshrrev_b32 v13, 8, v8')
    a('v_lshlrev_b32 v13, 2, v13')
    a('s_mul_i32 s27, s2, 13')
    a('s_lshl_b32 s28, s3, 2')
    srd(16, 8, 9, N*256, XU_OFF)
    srd(20, 6, 7, N*256)
    for i in range(4):
        a(f'v_add_u32 v14, {i}, v13')
        a('v_add_u32 v15, s27, v14')
        a('v_lshlrev_b32 v15, 8, v15')
        a('v_add3_u32 v15, v15, v1, s28')
        a('v_mov_b32 v16, 0x80000000')
        a('v_cmp_gt_u32 vcc, 13, v14')
        a(f'v_cndmask_b32 v{20+i}, v16, v15, vcc')
        a(f'buffer_load_dword v{24+i}, v{20+i}, s[16:19], 0 offen')
    a('s_waitcnt lgkmcnt(0)')
    a('s_barrier')
    a('s_lshl_b32 s26, s3, 11')
    a('v_add_u32 v12, s26, v8')
    for k in range(2):
        for w in range(4):
            a(f'ds_read_b128 v[{32+16*k+4*w}:{35+16*k+4*w}], v12 offset:{w*8192+k*1024}')
    a('s_waitcnt lgkmcnt(0)')
    for k in range(2):
        for i in range(4):
            b0=32+16*k+i
            a(f'v_add_f32 v{b0}, v{b0}, v{b0+4}')
            a(f'v_add_f32 v{b0+8}, v{b0+8}, v{b0+12}')
            a(f'v_add_f32 v{b0}, v{b0}, v{b0+8}')
    a('s_waitcnt vmcnt(0)')
    for i in range(4):
        a(f'v_lshlrev_b32 v64, 16, v{24+i}')
        a(f'v_and_b32 v65, 0xffff0000, v{24+i}')
        a(f'v_add_f32 v64, v64, v{32+i}')
        a(f'v_add_f32 v65, v65, v{48+i}')
        a(f'v_mul_f32 v66, {LOG2E_NEG}, v64'); a(f'v_mul_f32 v67, {LOG2E_NEG}, v65')
        a('v_exp_f32 v66, v66'); a('v_exp_f32 v67, v67')
        a('v_add_f32 v66, 1.0, v66'); a('v_add_f32 v67, 1.0, v67')
        a('v_rcp_f32 v66, v66'); a('v_rcp_f32 v67, v67')
        a('v_mul_f32 v64, v64, v66'); a('v_mul_f32 v65, v65, v67')
        a(f'v_cvt_pk_bf16_f32 v{68+i}, v64, v65')
        a(f'buffer_store_dword v{68+i}, v{20+i}, s[20:23], 0 offen')
    a.label('K2_END')
    a('s_endpgm')

def kd(name, vg, sg):
    return f'''.amdhsa_kernel {name}
  .amdhsa_next_free_vgpr {vg}
  .amdhsa_next_free_sgpr {sg}
  .amdhsa_accum_offset {vg}
  .amdhsa_group_segment_fixed_size 0
  .amdhsa_kernarg_size 80
  .amdhsa_user_sgpr_count 2
  .amdhsa_user_sgpr_kernarg_segment_ptr 1
  .amdhsa_system_sgpr_workgroup_id_x 1
.end_amdhsa_kernel'''

k1(); k2()
out=header()+'\n'+a.text()+'.section .rodata,"a"\n.p2align 6\n'+kd('egc_prep_kernel',256,64)+'\n.p2align 6\n'+kd('standalone__edge_featured_mpnn_egc__graph_kernel',128,64)+'\n'
dst=sys.argv[1] if len(sys.argv)>1 else 'standalone__edge_featured_mpnn_egc__graph.s'
open(dst,'w').write(out)
print('written',dst,len(out.split('\n')),'lines; nops',a.nop_count)
```

```python
import sys, os
sys.path.insert(0,'gen')
from asmlib import Asm
ENV=os.environ.get
NOGATHER=ENV('NOGATHER'); NOCOMP=ENV('NOCOMP'); NOLOOP=ENV('NOLOOP'); STAMPS=ENV('STAMPS')

N=12500; E=400000; NBK=1000; W=256; CH=1563
T_OFF   = 0
XU_OFF  = 0x1C00000
XAF_OFF = 0x2000000
CF_OFF  = 0x690000
OH_OFF  = 0x691000
OVC_OFF = 0x692000
OVF_OFF = 0x6A0000
CELL_OFF= 0xA00000
CEL2_OFF= 0x1280000
DBG_OFF = 0x1B00000
WS_SIZE = 268435456
OVS=1568
CST=32768+128
NG=(98,98,98,125)
NGEMM=sum(NG)
K1_GRID = 256+NGEMM+1
PRE=ENV('PRE','1')=='1'
SF=ENV('SF','')
LOG2E_NEG='0xbfb8aa3b'
OOB='0x80000000'
a=Asm()

def header():
    with open('standalone__edge_featured_mpnn_egc__graph.s.ref') as f:
        lines=f.read().split('\n')
    out=[]
    for l in lines:
        if l.startswith('; @launch'): break
        if l.startswith(';'): out.append(l)
    out.append(f'; @launch kernel=egc_prep_kernel grid=({K1_GRID},1,1) block=(256,1,1) lds=32784')
    out.append(f'; @launch kernel=standalone__edge_featured_mpnn_egc__graph_kernel grid=({NBK},1,1) block=(256,1,1) lds={LDS2}')
    out.append('.amdgcn_target "amdgcn-amd-amdhsa--gfx950"')
    out.append('.text')
    return '\n'.join(out)

def srd(d, lo, hi, nrec, add=0):
    if add:
        a(f's_add_u32 s{d}, s{lo}, {hex(add)}')
        a(f's_addc_u32 s{d+1}, s{hi}, 0')
    else:
        a(f's_mov_b32 s{d}, s{lo}')
        a(f's_mov_b32 s{d+1}, s{hi}')
    a(f's_mov_b32 s{d+2}, {hex(nrec)}')
    a(f's_mov_b32 s{d+3}, 0x00020000')

def wave_scan(*vs):
    for sh in (1,2,4,8):
        for v in vs: a(f'v_add_u32_dpp v{v}, v{v}, v{v} row_shr:{sh} row_mask:0xf bank_mask:0xf bound_ctrl:0')
    for v in vs: a(f'v_add_u32_dpp v{v}, v{v}, v{v} row_bcast:15 row_mask:0xa bank_mask:0xf')
    for v in vs: a(f'v_add_u32_dpp v{v}, v{v}, v{v} row_bcast:31 row_mask:0xc bank_mask:0xf')

def branch(op, lbl):
    a.fence()
    a(f'{op} {lbl}')

def k1():
    a.raw('.globl egc_prep_kernel\n.p2align 8\n.type egc_prep_kernel,@function\negc_prep_kernel:')
    a(f's_cmp_ge_u32 s2, {K1_GRID}')
    branch('s_cbranch_scc1','K1_END')
    a('s_load_dwordx4 s[4:7], s[0:1], 0')
    a('s_load_dwordx4 s[8:11], s[0:1], 16')
    a('s_load_dwordx4 s[12:15], s[0:1], 32')
    a('s_load_dwordx2 s[16:17], s[0:1], 48')
    a('s_load_dwordx2 s[18:19], s[0:1], 72')
    a('v_lshrrev_b32 v1, 6, v0')
    a('v_and_b32 v2, 63, v0')
    a('v_readfirstlane_b32 s3, v1')
    a('v_lshrrev_b32 v3, 4, v2')
    a('v_and_b32 v4, 15, v2')
    a('s_waitcnt lgkmcnt(0)')
    a('s_cmp_ge_u32 s2, 256')
    branch('s_cbranch_scc1','K1_GEMM')
    if ENV('NOSORT'): a('s_endpgm')
    srd(20, 8, 9, E*4)
    srd(24, 10, 11, E*4)
    srd(28, 18, 19, W*CST, CELL_OFF)
    srd(32, 18, 19, W*OVS*8, OVF_OFF)
    a(f's_mul_i32 s36, s2, {CH}')
    a(f's_sub_u32 s37, {E}, s36')
    a(f's_min_u32 s37, s37, {CH}')
    a('v_add_u32 v6, s36, v0')
    a('v_lshlrev_b32 v6, 2, v6')
    a('s_mov_b32 s43, 4096')
    for j in range(7):
        so='0' if j<4 else 's43'
        a(f'buffer_load_dword v{16+j}, v6, s[24:27], {so} offen offset:{(j&3)*1024}')
        a(f'buffer_load_dword v{24+j}, v6, s[20:23], {so} offen offset:{(j&3)*1024}')
    a('v_mov_b32 v8, 0')
    a('v_lshlrev_b32 v5, 5, v0')
    for k in range(4): a(f'ds_write_b32 v5, v8 offset:{k*8192}')
    a('v_mov_b32 v9, 0x8000')
    a('ds_write_b32 v9, v8')
    a('v_mov_b32 v7, 1')
    a('s_waitcnt lgkmcnt(0)')
    a('s_barrier')
    for j in range(7):
        a(f's_waitcnt vmcnt({12-2*j})')
        a(f'v_mul_u32_u24 v12, 83888, v{16+j}')
        a('v_lshrrev_b32 v12, 20, v12')
        a('v_mad_u32_u24 v13, v12, 25, 1')
        a('v_lshrrev_b32 v13, 1, v13')
        a(f'v_sub_u32 v13, v{16+j}, v13')
        a(f'v_add_u32 v14, {j*256}, v0')
        a(f'v_lshl_or_b32 v{40+j}, v13, 14, v{24+j}')
        a(f'v_lshl_or_b32 v{40+j}, v14, 18, v{40+j}')
        if j>=5:
            a('v_cmp_gt_u32 vcc, s37, v14')
            a('v_mov_b32 v15, 1023')
            a('v_cndmask_b32 v12, v15, v12, vcc')
        a(f'v_lshlrev_b32 v{32+j}, 5, v12')
        a(f'ds_add_rtn_u32 v{48+j}, v{32+j}, v7')
    a('s_mov_b64 s[44:45], 0')
    a('s_mov_b32 s42, 32736')
    a('v_mov_b32 v15, 32736')
    for j in range(7):
        a(f's_waitcnt lgkmcnt({6-j})')
        a(f'v_lshl_add_u32 v12, v{48+j}, 2, v{32+j}')
        a(f'v_cmp_gt_u32 vcc, 7, v{48+j}')
        a('v_cndmask_b32 v12, v15, v12, vcc')
        a(f'ds_write_b32 v12, v{40+j} offset:4')
        a(f'v_cmp_gt_u32 s[46:47], s42, v{32+j}')
        a('s_andn2_b64 s[46:47], s[46:47], vcc')
        a('s_or_b64 s[44:45], s[44:45], s[46:47]')
    a('s_cmp_eq_u64 s[44:45], 0')
    branch('s_cbranch_scc1','K1_NOOVF')
    srd(48, 18, 19, W*CST, CEL2_OFF)
    a(f's_mul_i32 s38, s2, {OVS*8}')
    a(f's_mul_i32 s39, s2, {CST}')
    for j in range(7):
        a(f'v_cmp_gt_u32 s[46:47], s42, v{32+j}')
        a(f'v_cmp_lt_u32 vcc, 6, v{48+j}')
        a('s_and_b64 vcc, vcc, s[46:47]')
        a('s_and_saveexec_b64 s[46:47], vcc')
        branch('s_cbranch_execz',f'K1_OV{j}')
        a(f'v_lshl_add_u32 v12, v{48+j}, 2, v{32+j}')
        a('v_subrev_u32 v12, 28, v12')
        a('v_mov_b32 v13, '+OOB)
        a(f'v_cmp_gt_u32 vcc, 15, v{48+j}')
        a('v_cndmask_b32 v12, v13, v12, vcc')
        a(f'buffer_store_dword v{40+j}, v12, s[48:51], s39 offen')
        a('s_andn2_b64 exec, exec, vcc')
        branch('s_cbranch_execz',f'K1_OV{j}')
        a('ds_add_rtn_u32 v12, v9, v7')
        a(f'v_lshrrev_b32 v14, 5, v{32+j}')
        a(f'v_mov_b32 v15, v{40+j}')
        a('s_waitcnt lgkmcnt(0)')
        a('v_lshlrev_b32 v12, 3, v12')
        a('buffer_store_dwordx2 v[14:15], v12, s[32:35], s38 offen')
        a.label(f'K1_OV{j}')
        a('s_mov_b64 exec, s[46:47]')
    a.label('K1_NOOVF')
    a('s_waitcnt lgkmcnt(0)')
    a('s_barrier')
    a('v_lshlrev_b32 v6, 4, v0')
    for k in range(8):
        a(f'ds_read_b128 v[{16+4*k}:{19+4*k}], v6 offset:{k*4096}')
    a('ds_read_b32 v9, v9')
    a(f's_mul_i32 s38, s2, {CST}')
    for k in range(8):
        a(f's_waitcnt lgkmcnt({8-k})')
        a(f'buffer_store_dwordx4 v[{16+4*k}:{19+4*k}], v6, s[28:31], s38 offen {SF}')
        if k<7: a('s_add_u32 s38, s38, 4096')
    a('s_waitcnt lgkmcnt(0)')
    srd(32, 18, 19, 1024, OVC_OFF)
    a('s_lshl_b32 s38, s2, 2')
    a('v_mov_b32 v10, '+OOB)
    a('v_cmp_eq_u32 vcc, 0, v0')
    a('v_cndmask_b32 v10, v10, v8, vcc')
    a('buffer_store_dword v9, v10, s[32:35], s38 offen')
    a('s_endpgm')
    a.label('K1_GEMM')
    a(f's_cmp_ge_u32 s2, {256+NGEMM}')
    branch('s_cbranch_scc1','K1_MISC')
    if ENV('NOGEMM'): a('s_endpgm')
    a('s_sub_u32 s36, s2, 256')
    a('s_mov_b32 s37, 0')
    for m in range(3):
        a(f's_cmp_ge_u32 s36, {NG[m]}')
        branch('s_cbranch_scc0','K1_MSEL')
        a(f's_sub_u32 s36, s36, {NG[m]}')
        a('s_add_u32 s37, s37, 1')
    a.label('K1_MSEL')
    a('s_add_u32 s20, s16, 0x8000'); a('s_addc_u32 s21, s17, 0')
    a('s_cmp_eq_u32 s37, 1'); a('s_cselect_b32 s20, s14, s20'); a('s_cselect_b32 s21, s15, s21')
    a('s_cmp_eq_u32 s37, 2'); a('s_cselect_b32 s20, s12, s20'); a('s_cselect_b32 s21, s13, s21')
    a('s_cmp_eq_u32 s37, 3'); a('s_cselect_b32 s20, s16, s20'); a('s_cselect_b32 s21, s17, s21')
    a('s_mov_b32 s22, 0x8000'); a('s_mov_b32 s23, 0x00020000')
    srd(24, 4, 5, N*256)
    a('s_mov_b32 s40, 0x05040100'); a('s_mov_b32 s41, 0x07060302')
    a('v_lshlrev_b32 v5, 11, v3')
    a('v_lshl_add_u32 v5, v4, 4, v5')
    a('s_lshl_b32 s42, s3, 13')
    for j in range(8):
        a(f'buffer_load_dwordx4 v[{64+4*j}:{67+4*j}], v5, s[20:23], s42 offen offset:{j*256}')
    a('s_lshl_b32 s44, s36, 3'); a('s_lshl_b32 s45, s3, 1'); a('s_add_u32 s44, s44, s45')
    a('s_add_u32 s45, s44, 1')
    a('s_lshl_b32 s46, s44, 4'); a('s_lshl_b32 s47, s45, 4')
    a('s_mul_i32 s48, s44, 25'); a('s_add_u32 s48, s48, 1'); a('s_lshr_b32 s48, s48, 1')
    a('s_mul_i32 s49, s45, 25'); a('s_add_u32 s49, s49, 1'); a('s_lshr_b32 s49, s49, 1')
    a('s_cmp_eq_u32 s37, 3'); a('s_cselect_b32 s46, s48, s46'); a('s_cselect_b32 s47, s49, s47')
    a('v_lshlrev_b32 v6, 8, v4')
    a('v_lshl_add_u32 v6, v3, 4, v6')
    a('s_lshl_b32 s48, s46, 8'); a('s_lshl_b32 s49, s47, 8')
    for k in range(2):
        for s in range(4):
            a(f'buffer_load_dwordx4 v[{96+16*k+4*s}:{99+16*k+4*s}], v6, s[24:27], s{48+k} offen offset:{s*64}')
    a('v_lshlrev_b32 v7, 4, v2')
    a('v_add_u32 v8, s42, v7')
    a('s_waitcnt vmcnt(8)')
    for t in range(8):
        tb=12+4*(t&1)
        for p in range(4):
            a(f'v_perm_b32 v{tb+p}, v{64+4*(2*p+1)+(t>>1)}, v{64+4*(2*p)+(t>>1)}, s{40+(t&1)}')
        a(f'ds_write_b128 v8, v[{tb}:{tb+3}] offset:{t*1024}')
    a('s_waitcnt lgkmcnt(0)')
    a('s_barrier')
    a(f's_add_u32 s28, s18, {hex(T_OFF)}'); a('s_addc_u32 s29, s19, 0'); a(f's_mov_b32 s30, {hex(N*512)}'); a('s_mov_b32 s43, 9')
    a('s_mov_b32 s31, 0x00020000')
    a(f's_mov_b32 s51, {LOG2E_NEG if PRE else "1.0"}')
    a('s_cmp_eq_u32 s37, 1')
    branch('s_cbranch_scc0','K1_G1')
    a('s_add_u32 s28, s28, 256'); a('s_addc_u32 s29, s29, 0'); a(f's_mov_b32 s30, {hex(N*512-256)}'); a('s_mov_b32 s51, 1.0')
    a.label('K1_G1')
    a('s_cmp_eq_u32 s37, 2')
    branch('s_cbranch_scc0','K1_G2')
    a(f's_add_u32 s28, s18, {hex(XU_OFF)}'); a('s_addc_u32 s29, s19, 0'); a(f's_mov_b32 s30, {hex(N*256)}'); a('s_mov_b32 s43, 8'); a('s_mov_b32 s51, 1.0')
    a.label('K1_G2')
    a('s_cmp_eq_u32 s37, 3')
    branch('s_cbranch_scc0','K1_G3')
    a(f's_add_u32 s28, s18, {hex(XAF_OFF)}'); a('s_addc_u32 s29, s19, 0'); a(f's_mov_b32 s30, {hex(NBK*4096)}')
    a.label('K1_G3')
    for r in range(32): a(f'v_mov_b32 v{20+r}, 0')
    for r in range(32): a(f'v_mov_b32 v{64+r}, 0')
    ring=[52,56,60,12,16]
    order=[(s,t) for s in range(4) for t in range(8)]
    for i in range(4):
        s,t=order[i]; a(f'ds_read_b128 v[{ring[i]}:{ring[i]+3}], v7 offset:{(s*8+t)*1024}')
    a('s_waitcnt vmcnt(0)')
    for i,(s,t) in enumerate(order):
        r=ring[i%5]
        if i+4<32:
            s2,t2=order[i+4]; r2=ring[(i+4)%5]
            a(f'ds_read_b128 v[{r2}:{r2+3}], v7 offset:{(s2*8+t2)*1024}')
        a(f's_waitcnt lgkmcnt({min(4,31-i)})')
        a(f'v_mfma_f32_16x16x32_bf16 v[{20+4*t}:{23+4*t}], v[{96+4*s}:{99+4*s}], v[{r}:{r+3}], v[{20+4*t}:{23+4*t}]')
        a(f'v_mfma_f32_16x16x32_bf16 v[{64+4*t}:{67+4*t}], v[{112+4*s}:{115+4*s}], v[{r}:{r+3}], v[{64+4*t}:{67+4*t}]')
    if PRE:
        for r in range(32): a(f'v_mul_f32 v{20+r}, s51, v{20+r}')
        for r in range(32): a(f'v_mul_f32 v{64+r}, s51, v{64+r}')
    a('s_cmp_eq_u32 s37, 3')
    branch('s_cbranch_scc1','K1_EA')
    a('v_mov_b32 v9, 1'); a('v_lshlrev_b32 v9, s43, v9')
    for k in range(2):
        ac=20 if k==0 else 64
        a(f'v_lshl_add_u32 v8, v3, 2, s{46+k}')
        a('v_lshlrev_b32 v8, s43, v8')
        a('v_lshl_add_u32 v8, v4, 4, v8')
        for i in range(4):
            tb=96+4*(i&1)+8*k
            for d in range(4):
                a(f'v_cvt_pk_bf16_f32 v{tb+d}, v{ac+4*(2*d)+i}, v{ac+4*(2*d+1)+i}')
            a(f'buffer_store_dwordx4 v[{tb}:{tb+3}], v8, s[28:31], 0 offen {SF}')
            if i<3: a('v_add_u32 v8, v8, v9')
    a('s_endpgm')
    a.label('K1_EA')
    a('v_lshrrev_b32 v9, 1, v3')
    a('v_lshl_add_u32 v9, v9, 4, v4')
    a('v_lshlrev_b32 v9, 4, v9')
    a('v_and_b32 v10, 1, v3')
    a('v_lshl_add_u32 v9, v10, 3, v9')
    for k in range(2):
        ac=20 if k==0 else 64
        a(f's_lshl_b32 s50, s{44+k}, 12')
        for t in range(8):
            tb=96+2*(t&3)+8*k
            a(f'v_cvt_pk_bf16_f32 v{tb}, v{ac+4*t}, v{ac+4*t+1}')
            a(f'v_cvt_pk_bf16_f32 v{tb+1}, v{ac+4*t+2}, v{ac+4*t+3}')
            a(f'buffer_store_dwordx2 v[{tb}:{tb+1}], v9, s[28:31], s50 offen offset:{t*512} {SF}')
    a('s_endpgm')
    a.label('K1_MISC')
    a('s_cmp_eq_u32 s3, 1')
    branch('s_cbranch_scc1','K1_OH')
    a('s_cmp_eq_u32 s3, 0')
    branch('s_cbranch_scc0','K1_END')
    srd(20, 16, 17, 4096, 0x10000)
    srd(28, 18, 19, 4096, CF_OFF)
    a('s_mov_b32 s40, 0x05040100'); a('s_mov_b32 s41, 0x07060302')
    a('v_lshlrev_b32 v5, 11, v3')
    a('v_lshl_add_u32 v5, v4, 4, v5')
    for j in range(8):
        a(f'buffer_load_dwordx4 v[{16+4*j}:{19+4*j}], v5, s[20:23], 0 offen offset:{j*256}')
    a('v_lshlrev_b32 v6, 4, v2')
    a('v_mov_b32 v7, '+OOB)
    a('v_cmp_gt_u32 vcc, 32, v2')
    a('v_cndmask_b32 v6, v7, v6, vcc')
    a('s_waitcnt vmcnt(0)')
    if PRE:
        for r in range(32):
            a(f'v_lshlrev_b32 v60, 16, v{16+r}'); a(f'v_and_b32 v61, 0xffff0000, v{16+r}')
            a(f'v_mul_f32 v60, {LOG2E_NEG}, v60'); a(f'v_mul_f32 v61, {LOG2E_NEG}, v61')
            a(f'v_cvt_pk_bf16_f32 v{16+r}, v60, v61')
    for t in range(8):
        tb=48+4*(t&1)
        for p in range(4):
            a(f'v_perm_b32 v{tb+p}, v{16+4*(2*p+1)+(t>>1)}, v{16+4*(2*p)+(t>>1)}, s{40+(t&1)}')
        a(f'buffer_store_dwordx4 v[{tb}:{tb+3}], v6, s[28:31], 0 offen offset:{t*512}')
    a('s_endpgm')
    a.label('K1_OH')
    srd(28, 18, 19, 1024, OH_OFF)
    for it in range(3):
        a(f'v_add_u32 v5, {it*64}, v2')
        a('v_lshrrev_b32 v6, 3, v5')
        a('v_and_b32 v7, 7, v5')
        a('v_lshrrev_b32 v8, 1, v6')
        a('v_and_b32 v9, 1, v6')
        a('v_lshlrev_b32 v9, 4, v9')
        a('v_mov_b32 v10, 0x3f80')
        a('v_lshlrev_b32 v10, v9, v10')
        a('v_cmp_eq_u32 vcc, v8, v7')
        a('v_cndmask_b32 v10, 0, v10, vcc')
        a('v_lshlrev_b32 v5, 2, v5')
        a('buffer_store_dword v10, v5, s[28:31], 0 offen')
    a.label('K1_END')
    a('s_endpgm')

CAPW=1792
CAPL=CAPW+16
BW=0; LA=8192; LE=LA+CAPL*4; LO=LE+CAPL*4; LM=LO+CAPL*4; LW=LM+CAPL*2
LDS2=max(LW+64, 32768)
PK=ENV('PK','1')=='1'
PRIO=ENV('PRIO','22,16,10')
def stamp(k):
    if not STAMPS: return
    a('s_memrealtime s[60:61]')
    a('s_waitcnt lgkmcnt(0)')
    a('s_lshl_b32 s62, s2, 2'); a('s_add_u32 s62, s62, s3'); a('s_lshl_b32 s62, s62, 7')
    a(f's_add_u32 s62, s62, {hex(DBG_OFF+k*8)}')
    a('v_mov_b32 v94, s60'); a('v_mov_b32 v95, s61')
    a('v_mov_b32 v93, 0')
    a('buffer_store_dwordx2 v[94:95], v93, s[12:15], s62 offen')
    a('s_memtime s[60:61]')
    a('s_waitcnt lgkmcnt(0)')
    a('v_mov_b32 v94, s60'); a('v_mov_b32 v95, s61')
    a('buffer_store_dwordx2 v[94:95], v93, s[12:15], s62 offen offset:64')
    a('s_waitcnt vmcnt(0)')

def emit_rec(r, p, t0):
    a(f'v_and_b32 v{t0}, 0x3fff, v{r}')
    a(f'v_lshlrev_b32 v{t0}, 9, v{t0}')
    a(f'v_bfe_u32 v{t0+1}, v{r}, 14, 4')
    a(f'v_lshrrev_b32 v{t0+2}, 18, v{r}')
    a(f'v_add_lshl_u32 v{t0+2}, v{t0+2}, v0, 5')
    a(f'v_lshlrev_b32 v{t0+3}, 2, v{p}')
    a(f'ds_write_b32 v{t0+3}, v{t0} offset:{LA}')
    a(f'ds_write_b32 v{t0+3}, v{t0+2} offset:{LE}')
    a(f'v_lshlrev_b32 v{t0+4}, 5, v{t0+1}')
    a(f'ds_write_b32 v{t0+3}, v{t0+4} offset:{LO}')
    a(f'v_lshlrev_b32 v{t0+1}, v{t0+1}, v11')
    a(f'v_lshlrev_b32 v{t0+3}, 1, v{p}')
    a(f'ds_write_b16 v{t0+3}, v{t0+1} offset:{LM}')

def wg_scan2(va, vb):
    a(f'v_mov_b32 v80, v{va}'); a(f'v_mov_b32 v81, v{vb}')
    wave_scan(80,81)
    a('v_readlane_b32 s28, v80, 63'); a('v_readlane_b32 s29, v81, 63')
    a(f'v_sub_u32 v{va}, v80, v{va}'); a(f'v_sub_u32 v{vb}, v81, v{vb}')
    a('s_lshl_b32 s30, s3, 3')
    a('v_mov_b32 v80, s28'); a('v_mov_b32 v81, s29'); a('v_mov_b32 v82, s30')
    a(f'ds_write_b64 v82, v[80:81] offset:{LW}')
    a('s_waitcnt lgkmcnt(0)')
    a('s_barrier')
    a('v_mov_b32 v82, 0')
    a(f'ds_read_b128 v[84:87], v82 offset:{LW}')
    a(f'ds_read_b128 v[88:91], v82 offset:{LW+16}')
    a('s_waitcnt lgkmcnt(0)')
    for i in range(8): a(f'v_readfirstlane_b32 s{44+i}, v{84+i}')
    a('s_add_u32 s40, s44, s46'); a('s_add_u32 s40, s40, s48'); a('s_add_u32 s40, s40, s50')
    a('s_add_u32 s41, s45, s47'); a('s_add_u32 s41, s41, s49'); a('s_add_u32 s41, s41, s51')
    for w in range(3):
        a(f's_cmp_gt_u32 s3, {w}'); a(f's_cselect_b32 s{44+2*w}, s{44+2*w}, 0'); a(f's_cselect_b32 s{45+2*w}, s{45+2*w}, 0')
    a('s_add_u32 s44, s44, s46'); a('s_add_u32 s44, s44, s48')
    a('s_add_u32 s45, s45, s47'); a('s_add_u32 s45, s45, s49')

def load_xu_operands(frag_off, xr, fr):
    a('v_lshrrev_b32 v13, 8, v8')
    a('v_lshlrev_b32 v12, 8, v5')
    a('v_lshl_add_u32 v12, v13, 4, v12')
    a('s_lshl_b32 s24, s56, 8')
    for s in range(4):
        a(f'buffer_load_dwordx4 v[{xr+4*s}:{xr+3+4*s}], v12, s[20:23], s24 offen offset:{s*64}')
    a('s_lshl_b32 s24, s3, 11'); a(f's_add_u32 s24, s24, {hex(frag_off)}')
    for s in range(4):
        for k in range(2):
            a(f'buffer_load_dwordx4 v[{fr+8*s+4*k}:{fr+3+8*s+4*k}], v8, s[12:15], s24 offen offset:{k*1024}')
        if s<3: a('s_add_u32 s24, s24, 8192')

XB=16; HV=32; ACC=48; BWR=80; AOP=88; SR=92; RR=12
def idx_read(tile_sreg):
    a(f's_lshl_b32 s40, s{tile_sreg}, 6')
    a('v_add_u32 v10, s40, v2')
    a(f'ds_read_b128 v[{RR}:{RR+3}], v10')
    a('v_add_u32 v10, s40, v4')
    a('ds_read_b32 v10, v10')
def mask_read(tile_sreg):
    a(f's_lshl_b32 s41, s{tile_sreg}, 5')
    a(f'v_add_u32 v{SR}, s41, v3')
    a(f'ds_read_b64 v[{SR}:{SR+1}], v{SR}')
def issue_xb_a():
    for i in range(4):
        a(f'v_add_u32 v{RR+i}, v{RR+i}, v1')
        if NOGATHER: a(f'v_mov_b32 v{RR+i}, v1')
        a(f'buffer_load_dwordx4 v[{XB+4*i}:{XB+3+4*i}], v{RR+i}, s[16:19], 0 offen')
    a('v_add_co_u32 v94, vcc, v6, v10'); a('v_addc_co_u32 v95, vcc, 0, v7, vcc')
    a(f'global_load_dwordx4 v[{AOP}:{AOP+3}], v[94:95], off')
def issue_hv(i):
    a(f'buffer_load_dwordx4 v[{HV+4*i}:{HV+3+4*i}], v{RR+i}, s[16:19], 0 offen offset:256')

def body(pf):
    mask_read(39)
    a(f'ds_read_b128 v[{BWR}:{BWR+3}], v8')
    a(f'ds_read_b128 v[{BWR+4}:{BWR+7}], v8 offset:1024')
    if pf: idx_read(42)
    for i in range(4):
        a(f's_waitcnt vmcnt({8-i})')
        for d in range(4):
            a(f'v_lshlrev_b32 v{ACC+4*(2*d)+i}, 16, v{XB+4*i+d}')
            a(f'v_and_b32 v{ACC+4*(2*d+1)+i}, 0xffff0000, v{XB+4*i+d}')
    a('s_waitcnt vmcnt(4)')
    npend = 2 if pf else 0
    for t in range(8):
        bw=BWR+4*(t&1)
        if t==0: a(f's_waitcnt lgkmcnt({1+npend})')
        elif t==1: a(f's_waitcnt lgkmcnt({1})') if pf else a('s_waitcnt lgkmcnt(1)')
        else: a(f's_waitcnt lgkmcnt({1 if t<7 else 0})')
        a(f'v_mfma_f32_16x16x32_bf16 v[{ACC+4*t}:{ACC+3+4*t}], v[{AOP}:{AOP+3}], v[{bw}:{bw+3}], v[{ACC+4*t}:{ACC+3+4*t}]')
        if t+2<8:
            a(f'ds_read_b128 v[{bw}:{bw+3}], v8 offset:{(t+2)*1024}')
    if pf: issue_xb_a()
    for k in range(2):
        a(f'v_lshrrev_b32 v{SR+k}, v5, v{SR+k}')
        a(f'v_and_b32 v{SR+k}, 0x10001, v{SR+k}')
        a(f'v_mul_u32_u24 v{SR+k}, 0x3f80, v{SR+k}')
    T0=BWR
    for p in range(2):
        if pf: a(f's_waitcnt vmcnt(7)')
        else:  a(f's_waitcnt vmcnt({2-2*p})')
        if NOCOMP:
            if pf: issue_hv(2*p); issue_hv(2*p+1)
            continue
        for tg in range(2):
            ts=range(4*tg,4*tg+4)
            pr=lambda t: ACC+4*t+2*p
            if PRE: pass
            elif PK:
                for t in ts: a(f'v_pk_mul_f32 v[{pr(t)}:{pr(t)+1}], v[{pr(t)}:{pr(t)+1}], s[64:65]')
            else:
                for t in ts:
                    a(f'v_mul_f32 v{pr(t)}, {LOG2E_NEG}, v{pr(t)}'); a(f'v_mul_f32 v{pr(t)+1}, {LOG2E_NEG}, v{pr(t)+1}')
            for t in ts:
                a(f'v_exp_f32 v{pr(t)}, v{pr(t)}'); a(f'v_exp_f32 v{pr(t)+1}, v{pr(t)+1}')
            if PK:
                for t in ts: a(f'v_pk_add_f32 v[{pr(t)}:{pr(t)+1}], v[{pr(t)}:{pr(t)+1}], s[66:67]')
            else:
                for t in ts:
                    a(f'v_add_f32 v{pr(t)}, 1.0, v{pr(t)}'); a(f'v_add_f32 v{pr(t)+1}, 1.0, v{pr(t)+1}')
            for t in ts:
                a(f'v_rcp_f32 v{pr(t)}, v{pr(t)}'); a(f'v_rcp_f32 v{pr(t)+1}, v{pr(t)+1}')
            for t in ts:
                for r in range(2):
                    h=HV+4*(2*p+r)+(t>>1); tt=T0+2*(t&3)+r
                    if t&1: a(f'v_and_b32 v{tt}, 0xffff0000, v{h}')
                    else:   a(f'v_lshlrev_b32 v{tt}, 16, v{h}')
            if tg==1 and pf:
                issue_hv(2*p); issue_hv(2*p+1)
            for t in ts:
                tt=T0+2*(t&3)
                if PK: a(f'v_pk_mul_f32 v[{pr(t)}:{pr(t)+1}], v[{pr(t)}:{pr(t)+1}], v[{tt}:{tt+1}]')
                else:
                    a(f'v_mul_f32 v{pr(t)}, v{pr(t)}, v{tt}'); a(f'v_mul_f32 v{pr(t)+1}, v{pr(t)+1}, v{tt+1}')
            for t in ts:
                a(f'v_cvt_pk_bf16_f32 v{ACC+4*t+p}, v{pr(t)}, v{pr(t)+1}')
    for t in range(8):
        a(f'v_mfma_f32_16x16x16_bf16 v[{96+4*t}:{99+4*t}], v[{SR}:{SR+1}], v[{ACC+4*t}:{ACC+4*t+1}], v[{96+4*t}:{99+4*t}]')

def k2():
    nm='standalone__edge_featured_mpnn_egc__graph_kernel'
    a.raw(f'.globl {nm}\n.p2align 8\n.type {nm},@function\n{nm}:')
    a(f's_cmp_ge_u32 s2, {NBK}')
    branch('s_cbranch_scc1','K2_END')
    if PRIO: a('s_setprio 3')
    a('s_load_dwordx4 s[4:7], s[0:1], 0')
    a('s_load_dwordx2 s[10:11], s[0:1], 56')
    a('s_load_dwordx2 s[8:9], s[0:1], 72')
    a('v_lshrrev_b32 v9, 6, v0')
    a('v_and_b32 v10, 63, v0')
    a('v_readfirstlane_b32 s3, v9')
    a('v_lshrrev_b32 v9, 4, v10')
    a('v_and_b32 v5, 15, v10')
    a('s_and_b32 s55, s2, 7'); a('s_mul_i32 s55, s55, 125'); a('s_lshr_b32 s24, s2, 3'); a('s_add_u32 s55, s55, s24')
    a('s_mul_i32 s56, s55, 25'); a('s_add_u32 s57, s56, 26'); a('s_add_u32 s56, s56, 1')
    a('s_lshr_b32 s56, s56, 1'); a('s_lshr_b32 s57, s57, 1'); a('s_sub_u32 s57, s57, s56')
    a('v_lshlrev_b32 v8, 4, v10')
    a('v_lshlrev_b32 v1, 4, v5')
    a('v_mov_b32 v11, 1')
    a(f'v_mul_u32_u24 v12, {CST}, v0')
    a('s_lshl_b32 s58, s55, 5')
    a(f's_add_u32 s24, s58, {hex(CELL_OFF)}')
    a(f's_mov_b32 s64, {LOG2E_NEG}'); a(f's_mov_b32 s65, {LOG2E_NEG}'); a('s_mov_b32 s66, 1.0'); a('s_mov_b32 s67, 1.0')
    a('s_waitcnt lgkmcnt(0)')
    srd(12, 8, 9, WS_SIZE)
    stamp(0)
    a('buffer_load_dwordx4 v[16:19], v12, s[12:15], s24 offen')
    a('buffer_load_dwordx4 v[20:23], v12, s[12:15], s24 offen offset:16')
    a('s_lshl_b32 s25, s55, 12')
    a(f's_add_u32 s25, s25, {hex(XAF_OFF-512)}')
    a(f'v_mov_b32 v12, {hex(CF_OFF)}')
    a('v_mov_b32 v13, s25')
    a('v_cmp_gt_u32 vcc, 32, v10')
    a('v_cndmask_b32 v12, v13, v12, vcc')
    a('v_add_u32 v12, v8, v12')
    a('s_lshl_b32 s26, s3, 10')
    a('buffer_load_dwordx4 v[112:115], v12, s[12:15], s26 offen')
    a('buffer_load_dwordx4 v[116:119], v12, s[12:15], s26 offen offset:512')
    srd(16, 8, 9, N*512, T_OFF)
    a('v_lshlrev_b32 v2, 4, v9'); a(f'v_add_u32 v2, {LA}, v2')
    a('v_lshlrev_b32 v3, 3, v9'); a(f'v_add_u32 v3, {LM}, v3')
    a(f'v_mov_b32 v4, {LE}'); a(f'v_mov_b32 v13, {LO}')
    a('v_cndmask_b32 v4, v13, v4, vcc')
    a('v_lshl_add_u32 v4, v5, 2, v4')
    a(f's_add_u32 s26, s8, {hex(OH_OFF-32)}'); a('s_addc_u32 s27, s9, 0')
    a('v_mov_b32 v6, s6'); a('v_mov_b32 v7, s7')
    a('v_mov_b32 v12, s26'); a('v_mov_b32 v13, s27')
    a('v_cndmask_b32 v6, v12, v6, vcc'); a('v_cndmask_b32 v7, v13, v7, vcc')
    a('v_lshlrev_b32 v12, 4, v9')
    a('v_add_co_u32 v6, vcc, v6, v12'); a('v_addc_co_u32 v7, vcc, 0, v7, vcc')
    a('v_mov_b32 v9, v0')
    a(f'v_mul_u32_u24 v0, {CH}, v0')
    a('s_mov_b32 s54, 0')
    a('s_mov_b32 s52, 0'); a('s_mov_b32 s53, 0')
    a('s_waitcnt vmcnt(2)')
    stamp(1)
    branch('s_branch','K2_FILL1')
    a.label('K2_FILL')
    a(f'v_mul_u32_u24 v12, {CST}, v9')
    a(f's_add_u32 s24, s58, {hex(CELL_OFF)}')
    a('buffer_load_dwordx4 v[16:19], v12, s[12:15], s24 offen')
    a('buffer_load_dwordx4 v[20:23], v12, s[12:15], s24 offen offset:16')
    a('s_waitcnt vmcnt(0)')
    a.label('K2_FILL1')
    a('v_cmp_lt_u32 vcc, 7, v16')
    a('s_and_saveexec_b64 s[36:37], vcc')
    branch('s_cbranch_execz','K2_NOSEC')
    a(f'v_mul_u32_u24 v12, {CST}, v9')
    a(f's_add_u32 s24, s58, {hex(CEL2_OFF)}')
    a('buffer_load_dwordx4 v[24:27], v12, s[12:15], s24 offen')
    a('buffer_load_dwordx4 v[28:31], v12, s[12:15], s24 offen offset:16')
    a('s_waitcnt vmcnt(0)')
    a.label('K2_NOSEC')
    a('s_mov_b64 exec, s[36:37]')
    a('v_cmp_lt_u32 vcc, 15, v16')
    a('s_cmp_lg_u64 vcc, 0')
    a('s_cselect_b32 s34, 1, 0')
    a('v_mov_b32 v12, s34'); a('s_lshl_b32 s26, s3, 2'); a('v_mov_b32 v13, s26')
    a(f'ds_write_b32 v13, v12 offset:{LW+32}')
    a('v_mov_b32 v32, 0'); a('v_mov_b32 v33, 0'); a('v_mov_b32 v37, 0'); a('v_mov_b32 v36, 1')
    for k in range(15):
        r=17+k
        a(f'v_cmp_lt_u32 vcc, {k}, v16')
        a('s_and_b64 exec, exec, vcc')
        if k>0: branch('s_cbranch_execz','K2_COUNTED')
        a(f'v_lshrrev_b32 v14, 8, v{r}')
        a('v_and_b32 v14, 48, v14') if not ENV('NORANGE') else a('v_mov_b32 v14, 0')
        a('v_lshlrev_b64 v[34:35], v14, v[36:37]')
        a('v_add_u32 v32, v32, v34'); a('v_add_u32 v33, v33, v35')
    a.label('K2_COUNTED')
    a('s_mov_b64 exec, s[36:37]')
    wg_scan2(32,33)
    a('v_mov_b32 v82, 0')
    a(f'ds_read_b128 v[84:87], v82 offset:{LW+32}')
    a('s_and_b32 s46, s40, 0xffff'); a('s_lshr_b32 s47, s40, 16'); a('s_and_b32 s48, s41, 0xffff'); a('s_lshr_b32 s49, s41, 16')
    a('s_add_u32 s50, s46, s47')
    a('s_add_u32 s51, s50, s48')
    a('s_add_u32 s31, s51, s49')
    a('s_lshl_b32 s46, s46, 16')
    a('s_add_u32 s44, s44, s46')
    a('s_lshl_b32 s51, s51, 16'); a('s_add_u32 s50, s50, s51'); a('s_add_u32 s45, s45, s50')
    a('v_add_u32 v32, s44, v32'); a('v_add_u32 v33, s45, v33')
    a('s_sub_u32 s32, s31, s54'); a(f's_min_u32 s32, s32, {CAPW}')
    for k in range(15):
        r=17+k
        a(f'v_cmp_lt_u32 vcc, {k}, v16')
        a('s_and_b64 exec, exec, vcc')
        if k>0: branch('s_cbranch_execz','K2_FILLED')
        a(f'v_lshrrev_b32 v14, 8, v{r}')
        a('v_and_b32 v14, 48, v14') if not ENV('NORANGE') else a('v_mov_b32 v14, 0')
        a('v_lshrrev_b64 v[34:35], v14, v[32:33]')
        a('v_and_b32 v34, 0xffff, v34')
        a('v_subrev_u32 v34, s54, v34')
        a('v_lshlrev_b64 v[38:39], v14, v[36:37]')
        a('v_add_u32 v32, v32, v38'); a('v_add_u32 v33, v33, v39')
        a('v_cmp_gt_u32 vcc, s32, v34')
        a('s_and_saveexec_b64 s[26:27], vcc')
        emit_rec(r, 34, 40)
        a('s_mov_b64 exec, s[26:27]')
    a.label('K2_FILLED')
    a('s_mov_b64 exec, s[36:37]')
    a('s_waitcnt lgkmcnt(0)')
    a('v_or3_b32 v84, v84, v85, v86'); a('v_or_b32 v84, v84, v87')
    a('v_readfirstlane_b32 s33, v84')
    stamp(2)
    a('s_cmp_lg_u32 s54, 0')
    branch('s_cbranch_scc1','K2_PROC')
    a('s_lshl_b32 s26, s3, 11')
    a('v_add_u32 v14, s26, v8')
    a('s_waitcnt vmcnt(0)')
    a('ds_write_b128 v14, v[112:115]')
    a('ds_write_b128 v14, v[116:119] offset:1024')
    a('s_waitcnt lgkmcnt(0)')
    for r in range(32): a(f'v_mov_b32 v{96+r}, 0')
    a.label('K2_PROC')
    a('s_add_u32 s38, s32, 15'); a('s_and_b32 s38, s38, 0xfffffff0')
    a('v_lshrrev_b32 v16, 4, v8')
    a('v_add_u32 v16, s32, v16')
    a('v_cmp_gt_u32 vcc, s38, v16')
    a('s_and_saveexec_b64 s[36:37], vcc')
    branch('s_cbranch_execz','K2_PAD_DONE')
    a('v_lshlrev_b32 v17, 2, v16')
    a('v_mov_b32 v18, 0'); a('v_mov_b32 v19, 512')
    a(f'ds_write_b32 v17, v18 offset:{LA}')
    a(f'ds_write_b32 v17, v18 offset:{LE}')
    a(f'ds_write_b32 v17, v19 offset:{LO}')
    a('v_lshlrev_b32 v17, 1, v16')
    a(f'ds_write_b16 v17, v18 offset:{LM}')
    a.label('K2_PAD_DONE')
    a('s_mov_b64 exec, s[36:37]')
    stamp(3)
    a('s_waitcnt lgkmcnt(0)')
    a('s_barrier')
    stamp(4)
    a('s_lshr_b32 s38, s38, 4')
    if NOLOOP: a('s_mov_b32 s38, 0')
    a('s_add_u32 s39, s3, s2'); a('s_and_b32 s39, s39, 3')
    a('s_cmp_ge_u32 s39, s38')
    branch('s_cbranch_scc1','K2_TILES_DONE')
    idx_read(39)
    a('s_waitcnt lgkmcnt(0)')
    issue_xb_a()
    for i in range(4): issue_hv(i)
    a.label('K2_TILE')
    if PRIO:
        th=[int(x) for x in PRIO.split(',')]
        a('s_sub_u32 s40, s38, s39')
        a(f's_cmp_ge_u32 s40, {th[0]}')
        a('s_cbranch_scc1 K2_PR_DONE')
        a('s_setprio 2')
        a(f's_cmp_ge_u32 s40, {th[1]}')
        a('s_cbranch_scc1 K2_PR_DONE')
        a('s_setprio 1')
        a(f's_cmp_ge_u32 s40, {th[2]}')
        a('s_cbranch_scc1 K2_PR_DONE')
        a('s_setprio 0')
        a.raw('K2_PR_DONE:')
    a('s_add_u32 s42, s39, 4')
    a('s_cmp_lt_u32 s42, s38')
    branch('s_cbranch_scc0','K2_LAST')
    body(True)
    a('s_mov_b32 s39, s42')
    branch('s_branch','K2_TILE')
    a.label('K2_LAST')
    body(False)
    a.label('K2_TILES_DONE')
    stamp(5)
    a('s_barrier')
    a('s_cmp_lg_u32 s52, 0')
    branch('s_cbranch_scc1','K2_OVNEXT')
    a(f's_add_u32 s54, s54, {CAPW}')
    a('s_cmp_lt_u32 s54, s31')
    branch('s_cbranch_scc1','K2_FILL')
    a('s_cmp_eq_u32 s33, 0')
    branch('s_cbranch_scc1','K2_RED')
    a('v_lshlrev_b32 v12, 2, v9')
    a(f's_mov_b32 s24, {hex(OVC_OFF)}')
    a('buffer_load_dword v92, v12, s[12:15], s24 offen')
    a('s_waitcnt vmcnt(0)')
    a(f'v_min_u32 v92, {CH}, v92')
    a('v_mov_b32 v80, v92')
    for sh in (1,2,4,8):
        a(f'v_max_u32_dpp v80, v80, v80 row_shr:{sh} row_mask:0xf bank_mask:0xf bound_ctrl:0')
    a('v_max_u32_dpp v80, v80, v80 row_bcast:15 row_mask:0xa bank_mask:0xf')
    a('v_max_u32_dpp v80, v80, v80 row_bcast:31 row_mask:0xc bank_mask:0xf')
    a('v_readlane_b32 s28, v80, 63')
    a('s_lshl_b32 s30, s3, 2')
    a('v_mov_b32 v80, s28'); a('v_mov_b32 v82, s30')
    a(f'ds_write_b32 v82, v80 offset:{LW+48}')
    a('s_waitcnt lgkmcnt(0)')
    a('s_barrier')
    a('v_mov_b32 v82, 0')
    a(f'ds_read_b128 v[84:87], v82 offset:{LW+48}')
    a('s_waitcnt lgkmcnt(0)')
    a('v_max3_u32 v84, v84, v85, v86'); a('v_max_u32 v84, v84, v87')
    a('v_readfirstlane_b32 s53, v84')
    a.label('K2_OVNEXT')
    a('s_cmp_ge_u32 s52, s53')
    branch('s_cbranch_scc1','K2_RED0')
    a('v_lshlrev_b32 v12, 2, v9')
    a(f's_mov_b32 s24, {hex(OVC_OFF)}')
    a('buffer_load_dword v92, v12, s[12:15], s24 offen')
    a(f'v_mul_u32_u24 v12, {OVS*8}, v9')
    a('s_lshl_b32 s24, s52, 3')
    a(f's_add_u32 s24, s24, {hex(OVF_OFF)}')
    a('buffer_load_dwordx4 v[16:19], v12, s[12:15], s24 offen')
    a('buffer_load_dwordx4 v[20:23], v12, s[12:15], s24 offen offset:16')
    a('s_waitcnt vmcnt(0)')
    a(f'v_min_u32 v92, {CH}, v92')
    a('v_mov_b32 v32, 0'); a('v_mov_b32 v33, 0')
    for k in range(4):
        a(f's_add_u32 s24, s52, {k}')
        a('v_cmp_lt_u32 vcc, s24, v92')
        a(f'v_cmp_eq_u32 s[26:27], s55, v{16+2*k}')
        a('s_and_b64 vcc, vcc, s[26:27]')
        a(f'v_cndmask_b32 v{24+k}, 0, v11, vcc')
        a(f'v_add_u32 v32, v32, v{24+k}')
    wg_scan2(32,33)
    a('s_mov_b32 s32, s40')
    a('v_add_u32 v32, s44, v32')
    a('s_mov_b64 s[36:37], exec')
    for k in range(4):
        a('s_mov_b64 exec, s[36:37]')
        a(f'v_cmp_eq_u32 vcc, 1, v{24+k}')
        a('s_and_b64 exec, s[36:37], vcc')
        branch('s_cbranch_execz',f'K2_OVS{k}')
        emit_rec(17+2*k, 32, 40)
        a('v_add_u32 v32, 1, v32')
        a.label(f'K2_OVS{k}')
    a('s_mov_b64 exec, s[36:37]')
    a('s_add_u32 s52, s52, 4')
    branch('s_branch','K2_PROC')
    a.label('K2_RED0')
    a.label('K2_RED')
    stamp(6)
    a('s_lshl_b32 s26, s3, 13')
    a('v_add_u32 v12, s26, v8')
    for t in range(8):
        a(f'ds_write_b128 v12, v[{96+4*t}:{99+4*t}] offset:{t*1024}')
    a('v_lshrrev_b32 v13, 8, v8')
    a('v_lshlrev_b32 v13, 2, v13')
    a('s_lshl_b32 s28, s3, 2')
    srd(16, 10, 11, N*256)
    srd(20, 8, 9, N*256, XU_OFF)
    a('v_mov_b32 v16, '+OOB)
    for i in range(4):
        a(f'v_add_u32 v14, {i}, v13')
        a('v_add_u32 v15, s56, v14')
        a('v_lshlrev_b32 v15, 8, v15')
        a('v_add3_u32 v15, v15, v1, s28')
        a('v_cmp_gt_u32 vcc, s57, v14')
        a(f'v_cndmask_b32 v{20+i}, v16, v15, vcc')
        a(f'buffer_load_dword v{24+i}, v{20+i}, s[20:23], 0 offen')
    a('s_waitcnt lgkmcnt(0)')
    a('s_barrier')
    a('s_lshl_b32 s26, s3, 11')
    a('v_add_u32 v12, s26, v8')
    for k in range(2):
        for w in range(4):
            a(f'ds_read_b128 v[{96+16*k+4*w}:{99+16*k+4*w}], v12 offset:{w*8192+k*1024}')
    a('s_waitcnt lgkmcnt(0)')
    for k in range(2):
        for i in range(4):
            b0=96+16*k+i
            a(f'v_add_f32 v{b0}, v{b0}, v{b0+4}')
            a(f'v_add_f32 v{b0+8}, v{b0+8}, v{b0+12}')
            a(f'v_add_f32 v{80+4*k+i}, v{b0}, v{b0+8}')
    a('s_waitcnt vmcnt(0)')
    for i in range(4):
        a(f'v_lshlrev_b32 v64, 16, v{24+i}')
        a(f'v_and_b32 v65, 0xffff0000, v{24+i}')
        a(f'v_add_f32 v64, v64, v{80+i}')
        a(f'v_add_f32 v65, v65, v{84+i}')
        a(f'v_mul_f32 v66, {LOG2E_NEG}, v64'); a(f'v_mul_f32 v67, {LOG2E_NEG}, v65')
        a('v_exp_f32 v66, v66'); a('v_exp_f32 v67, v67')
        a('v_add_f32 v66, 1.0, v66'); a('v_add_f32 v67, 1.0, v67')
        a('v_rcp_f32 v66, v66'); a('v_rcp_f32 v67, v67')
        a('v_mul_f32 v64, v64, v66'); a('v_mul_f32 v65, v65, v67')
        a(f'v_cvt_pk_bf16_f32 v{68+i}, v64, v65')
        a(f'buffer_store_dword v{68+i}, v{20+i}, s[16:19], 0 offen')
    stamp(7)
    a.label('K2_END')
    a('s_endpgm')

def kd(name, vg, sg):
    return f'''.amdhsa_kernel {name}
  .amdhsa_next_free_vgpr {vg}
  .amdhsa_next_free_sgpr {sg}
  .amdhsa_accum_offset {vg}
  .amdhsa_group_segment_fixed_size 0
  .amdhsa_kernarg_size 80
  .amdhsa_user_sgpr_count 2
  .amdhsa_user_sgpr_kernarg_segment_ptr 1
  .amdhsa_system_sgpr_workgroup_id_x 1
.end_amdhsa_kernel'''

k1(); k2()
out=header()+'\n'+a.text()+'.section .rodata,"a"\n.p2align 6\n'+kd('egc_prep_kernel',128,64)+'\n.p2align 6\n'+kd('standalone__edge_featured_mpnn_egc__graph_kernel',128,72)+'\n'
dst=sys.argv[1] if len(sys.argv)>1 else 'standalone__edge_featured_mpnn_egc__graph.s'
open(dst,'w').write(out)
print('written',dst,len(out.split('\n')),'lines; nops',a.nop_count,'LDS2',LDS2)
```
